```python
import torch

def _softmax(x, axis=-1):
    return torch.softmax(x, dim=axis)

def _gelu(x):
    return torch.nn.functional.gelu(x, approximate='tanh')

def _silu(x):
    return torch.nn.functional.silu(x)

def _sigmoid(x):
    return torch.sigmoid(x)

def _layernorm(x, axis=-1, eps=1e-05):
    m = x.mean(dim=axis, keepdim=True)
    v = x.var(dim=axis, keepdim=True, unbiased=False)
    return (x - m) / torch.sqrt(v + eps)

def _scatter_add(tgt, idx, src, axis=0):
    return tgt.clone().index_add_(axis, idx, src)

def _segment_sum(src, seg, n):
    out = torch.zeros((n,) + src.shape[1:], dtype=src.dtype)
    return out.index_add_(0, seg, src)

def _pad(x, pw):
    flat = tuple((v for pair in reversed(pw) for v in pair))
    return torch.nn.functional.pad(x, flat)
kernel_name = 'interleave_layers__memory_aug_recurrent_mem_tr__dense_activation_silu__prompt'

def setup_inputs():

    _w = lambda a: (lambda t: t.to(torch.bfloat16) if t.is_floating_point() else t)(torch.as_tensor(a))

    def _A_setup():
        B, S, Dm = (1, 2048, 640)
        H, Dh = (32, 128)
        M, seg = (8, 32)
        seg = min(seg, S)
        S = S // seg * seg
        return {'x': _w((lambda *s: torch.randn(*s, dtype=torch.bfloat16) * 0.05)(B, S, Dm)), 'mem0': _w((lambda *s: torch.randn(*s, dtype=torch.bfloat16) * 0.4)(B, M, Dm)), 'Wq': _w((lambda *s: torch.randn(*s, dtype=torch.bfloat16) * 1.6)(Dm, H, Dh) * Dm ** (-0.5)), 'Wk': _w((lambda *s: torch.randn(*s, dtype=torch.bfloat16) * 1.6)(Dm, H, Dh) * Dm ** (-0.5)), 'Wv': _w((lambda *s: torch.randn(*s, dtype=torch.bfloat16) * 0.4)(Dm, H, Dh) * Dm ** (-0.5)), 'Wo': _w((lambda *s: torch.randn(*s, dtype=torch.bfloat16) * 0.4)(H, Dh, Dm) * (H * Dh) ** (-0.5)), 'seg_len': seg}
    _A_in = _A_setup()

    def _B_setup():
        B, S, D, F = (1, 2048, 640, 1728)
        return {'x': _w((lambda *s: torch.randn(*s, dtype=torch.bfloat16) * 0.05)(B, S, D)), 'w1': _w((lambda *s: torch.randn(*s, dtype=torch.bfloat16) * 1.6)(D, F) * D ** (-0.5)), 'w2': _w((lambda *s: torch.randn(*s, dtype=torch.bfloat16) * 0.2)(F, D) * F ** (-0.5))}
    _B_in = _B_setup()
    return {'A_x': _A_in['x'], 'A_mem0': _A_in['mem0'], 'A_Wq': _A_in['Wq'], 'A_Wk': _A_in['Wk'], 'A_Wv': _A_in['Wv'], 'A_Wo': _A_in['Wo'], 'A_seg_len': _A_in['seg_len'], 'B_x': _B_in['x'], 'B_w1': _B_in['w1'], 'B_w2': _B_in['w2']}

def reference(A_x, A_mem0, A_Wq, A_Wk, A_Wv, A_Wo, A_seg_len, B_x, B_w1, B_w2):

    def _A_ref(x, mem0, Wq, Wk, Wv, Wo, seg_len):
        B, S, Dm = x.shape
        H, Dh = (Wq.shape[1], Wq.shape[2])
        M = mem0.shape[1]
        scale = Dh ** (-0.5)
        n_seg = S // seg_len
        L = M + seg_len
        idx = torch.arange(L)
        mask = (idx[:, None] < M) | (idx[:, None] >= idx[None, :])
        mem = mem0
        outs = []
        for s in range(n_seg):
            xs = x[:, s * seg_len:(s + 1) * seg_len, :].clone()
            h = torch.concatenate([mem, xs], axis=1)
            q = torch.einsum('btd,dhe->bhte', h, Wq)
            k = torch.einsum('btd,dhe->bhte', h, Wk)
            v = torch.einsum('btd,dhe->bhte', h, Wv)
            scores = torch.einsum('bhqe,bhke->bhqk', q, k) * scale
            scores = torch.where(mask[None, None], scores, -1000000000.0)
            p = _softmax(scores, axis=-1)
            o = torch.einsum('bhqk,bhke->bhqe', p, v)
            o = torch.einsum('bhte,hed->btd', o, Wo)
            mem = o[:, :M, :].clone()
            outs.append(o[:, M:, :])
        return torch.concatenate(outs, axis=1)

    def _B_ref(x, w1, w2):
        h = torch.einsum('bsd,df->bsf', x, w1)
        h = _silu(h)
        out = torch.einsum('bsf,fd->bsd', h, w2)
        return out
    x = A_x
    x = x + _A_ref(_layernorm(x, axis=-1), A_mem0, A_Wq, A_Wk, A_Wv, A_Wo, A_seg_len)
    x = x + _B_ref(_layernorm(x, axis=-1), B_w1, B_w2)
    x = x + _A_ref(_layernorm(x, axis=-1), A_mem0, A_Wq, A_Wk, A_Wv, A_Wo, A_seg_len)
    x = x + _B_ref(_layernorm(x, axis=-1), B_w1, B_w2)
    return x
```

```python
import re

_REG = re.compile(r'^(-|abs\()?([vas])(?:(\d+)|\[(\d+):(\d+)\])\)?$')

def regs_of(tok):
    tok = tok.strip()
    if tok in ('vcc',): return {('s', 106), ('s', 107)}
    if tok == 'vcc_lo': return {('s', 106)}
    if tok == 'vcc_hi': return {('s', 107)}
    if tok == 'exec': return {('s', 126), ('s', 127)}
    if tok == 'exec_lo': return {('s', 126)}
    if tok == 'exec_hi': return {('s', 127)}
    if tok == 'm0': return {('s', 124)}
    m = _REG.match(tok)
    if not m: return set()
    f = m.group(2)
    if m.group(3) is not None: return {(f, int(m.group(3)))}
    return {(f, i) for i in range(int(m.group(4)), int(m.group(5)) + 1)}

TRANS = ('v_exp_f32', 'v_log_f32', 'v_rcp_f32', 'v_rsq_f32', 'v_sqrt_f32', 'v_sin_f32', 'v_cos_f32', 'v_rcp_iflag_f32')

class Insn:
    def __init__(self, text):
        self.text = text
        code = text.split(';')[0].strip()
        parts = code.split(None, 1)
        self.mn = mn = parts[0]
        rest = parts[1] if len(parts) > 1 else ''
        ops = [o.strip() for o in rest.split(',')] if rest else []
        mods = ''
        if ops:
            last = ops[-1].split(None, 1)
            ops[-1] = last[0]
            if len(last) > 1: mods = last[1]
        self.ops, self.mods = ops, mods
        R = [regs_of(o) for o in ops]
        self.mfma = mn.startswith('v_mfma') or mn.startswith('v_smfmac')
        self.valu = mn.startswith('v_') and not self.mfma
        self.vmem = mn.startswith('buffer_') or mn.startswith('global_')
        self.ds = mn.startswith('ds_')
        self.salu = mn.startswith('s_')
        self.trans = mn in TRANS
        self.dpp = '_dpp' in mn
        self.permlane = mn.startswith('v_permlane')
        self.lanerd = mn.startswith('v_readfirstlane') or mn.startswith('v_readlane')
        self.branch = mn.startswith('s_cbranch') or mn == 's_branch'
        self.uncond = mn in ('s_branch', 's_endpgm')
        self.states = 1
        self.W, self.Rd = set(), set()
        self.A = self.C = set(); self.passes = 0
        self.store_data = set(); self.ldsdma = False
        U = lambda l: set().union(*l) if l else set()
        if mn == 's_nop':
            self.states = int(ops[0], 0) + 1
        elif self.mfma:
            self.passes = 8 if '32x32' in mn else 4
            self.W = R[0]
            if mn.startswith('v_smfmac'):
                self.A = R[1] | R[2] | R[3]; self.C = R[0]
            else:
                self.A = R[1] | R[2]; self.C = R[3]
            self.Rd = self.A | self.C
        elif self.valu:
            if self.permlane:
                self.W = R[0] | R[1]; self.Rd = R[0] | R[1]
            elif '_co_' in mn:
                self.W = R[0] | R[1]; self.Rd = U(R[2:])
            else:
                self.W = R[0]; self.Rd = U(R[1:])
                if mn.startswith('v_fmac') or mn.startswith('v_dot2c') or self.dpp or mn.startswith('v_writelane'):
                    self.Rd |= R[0]
        elif self.vmem:
            toks = mods.split()
            if mn.startswith('buffer_wbl2') or mn.startswith('buffer_inv'):
                pass
            elif 'lds' in toks:
                self.ldsdma = True; self.Rd = U(R) | {('s', 124)}
            elif '_load' in mn:
                self.W = R[0]; self.Rd = U(R[1:])
                if 'd16' in mn: self.Rd |= R[0]
            elif '_store' in mn:
                self.Rd = U(R)
                if mn.endswith('x4') or mn.endswith('x3'): self.store_data = R[0]
            elif '_atomic' in mn:
                self.Rd = U(R)
                if 'sc0' in toks: self.W = R[0]
            else:
                raise ValueError(text)
        elif self.ds:
            if mn.startswith('ds_read') or 'permute' in mn or 'swizzle' in mn:
                self.W = R[0]; self.Rd = U(R[1:])
            else:
                self.Rd = U(R)
        elif self.salu:
            if mn.startswith('s_cmp') or self.branch or mn in ('s_waitcnt', 's_barrier', 's_endpgm', 's_sleep', 's_setprio', 's_bitcmp1_b32', 's_bitcmp0_b32'):
                self.Rd = U(R)
            else:
                self.W = R[0] if R else set(); self.Rd = U(R[1:])
                if 'saveexec' in mn: self.W |= {('s', 126), ('s', 127)}
        else:
            raise ValueError('unknown insn ' + text)

def need(p, c):
    n = 0
    pv = {r for r in p.W if r[0] != 's'}
    ps = {r for r in p.W if r[0] == 's'}
    if p.valu:
        if pv:
            if c.mfma and pv & c.Rd: n = max(n, 2)
            if c.valu and (c.permlane or c.dpp) and pv & c.Rd: n = max(n, 2)
            if c.valu and c.lanerd and pv & c.Rd: n = max(n, 1)
            if p.trans and (c.valu or c.vmem or c.ds) and pv & c.Rd: n = max(n, 1)
            if p.mn.startswith('v_dot2') and pv & (c.Rd | c.W) and c.mn != p.mn: n = max(n, 3)
        if ps:
            if c.valu and ps & c.Rd: n = max(n, 4 if c.lanerd or c.mn.startswith('v_writelane') else 2)
            if c.vmem and ps & c.Rd: n = max(n, 5)
    if p.mfma:
        big = 12 if p.passes == 8 else 8
        if c.mfma:
            if p.W & c.A: n = max(n, big)
            if p.W & c.C and not (p.W == c.C and p.passes == c.passes): n = max(n, big - 2)
            if p.W & c.W and not (p.W & c.C): n = max(n, big)
        elif c.valu or c.vmem or c.ds:
            if p.W & (c.Rd | c.W): n = max(n, big)
            if c.valu and p.C & c.W: n = max(n, 7 if p.passes == 8 else 3)
    if p.store_data and p.store_data & c.W:
        n = max(n, 2 if c.valu else 1)
    if p.salu and ('s', 124) in p.W and c.ldsdma: n = max(n, 1)
    return n

class Asm:
    def __init__(self):
        self.items = []
        self._lbl = 0
    def __call__(self, text):
        for line in text.split('\n'):
            line = line.strip()
            if not line or line.startswith(';'):
                if line: self.items.append(line)
                continue
            if line.endswith(':'):
                self.items.append(('label', line[:-1])); continue
            if line.startswith('.'):
                self.items.append(line); continue
            self.items.append(Insn(line))
    def label(self, name): self.items.append(('label', name))
    def newlabel(self, base='L'):
        self._lbl += 1
        return f'{base}_{self._lbl}'
    def comment(self, t): self.items.append('; ' + t)
    def finalize(self):
        items = self.items
        def build():
            src = {}
            for i, it in enumerate(items):
                if isinstance(it, Insn) and it.branch:
                    src.setdefault(it.ops[0], []).append(i)
            return src
        src = build()
        pad = {}
        MAXD = 12
        def deficit(ci):
            c = items[ci]
            worst = 0
            stack = [(ci - 1, 0)]
            seen = {}
            while stack:
                i, d = stack.pop()
                while i >= 0 and d < MAXD:
                    if seen.get(i, 99) <= d: break
                    seen[i] = d
                    it = items[i]
                    if isinstance(it, tuple):
                        for s in src.get(it[1], []):
                            stack.append((s, d))
                        j = i - 1
                        while j >= 0 and not isinstance(items[j], Insn):
                            if isinstance(items[j], tuple): break
                            j -= 1
                        if j >= 0 and isinstance(items[j], Insn) and items[j].uncond: break
                    elif isinstance(it, Insn):
                        worst = max(worst, need(it, c) - d)
                        d += it.states + pad.get(i, 0)
                    i -= 1
            return worst
        npad = 0
        for ci, it in enumerate(items):
            if isinstance(it, Insn):
                d = deficit(ci)
                if d > 0:
                    pad[ci] = d; npad += 1
        out = []
        for i, it in enumerate(items):
            if isinstance(it, tuple): out.append(it[1] + ':')
            elif isinstance(it, Insn):
                if i in pad: out.append(f'    s_nop {pad[i]-1}')
                out.append('    ' + it.text)
            else: out.append(it)
        self.npad = npad
        return '\n'.join(out) + '\n'

def vr(b, n=1, f='v'):
    return f'{f}{b}' if n == 1 else f'{f}[{b}:{b+n-1}]'
def ar(b, n=1): return vr(b, n, 'a')
def sr(b, n=1): return vr(b, n, 's')
def wr(b, n=1):
    if b < 256:
        assert b + n <= 256
        return ar(b, n)
    return vr(b - 256, n)
```

```python
from gen import *
import roles as R
SMF = 'v_smfmac_f32_16x16x64_bf16'
M32 = 'v_mfma_f32_16x16x32_bf16'
M16 = 'v_mfma_f32_16x16x16_bf16'

def role_head():
    a.label('L_role_head')
    Q0, Q1, K0, V0, V1 = range(5)
    def W(t, ks):
        b = t * 80 + ks * 8
        return b if b < 256 else 256 + 112 + (b - 256)
    MEMT, QK, KVX, K1W = 0, 10240, 16384, 65536
    RS, MS = 288, 2304
    vIdx, vLin, vAtr, vK1, vKp, vKx, vVx, vQw, vQr, vMp, vMp2, vO, vL8, vKr, vFl, vT = [f'v{i}' for i in range(2, 18)]
    A, AQ, AV, WT, X = 18, 58, 74, 82, 106
    PKD = X
    sH, sCur, sNxt, sNx2, sMode, sStage, sB0, sB1, sB2, sPend, sPmOff, sPmVal, sCe, sMx, sO, sKm = [f's{i}' for i in range(60, 76)]
    sLo, sHi = 's[76:77]', 's[78:79]'
    srd(SA, P_WQ, 5242880); srd(SB, P_WK, 5242880); srd(SC, P_WV, 5242880)
    a(f's_lshl_b32 {sH}, {sG}, 4\n s_add_u32 {sH}, {sH}, {sT}')
    lane_fields()
    R.idx_reg(vIdx, vT)
    a(f's_lshl_b32 {sStage}, {sW}, 14')
    a(f'''
    v_and_b32 v250, 1, v252
    v_lshlrev_b32 v250, 5, v250
    v_lshrrev_b32 v251, 1, v252
    v_lshl_add_u32 v250, v251, 3, v250
    v_add_u32 v250, v253, v250
    v_lshlrev_b32 v250, 6, v250
    v_lshl_add_u32 v250, v254, 3, v250
    v_add_u32 v110, {sStage}, v250
    v_lshlrev_b32 {vLin}, 4, v1
    s_mul_i32 s55, {sW}, 20480
    s_add_u32 s55, s55, {K1W}
    v_add_u32 {vK1}, s55, {vLin}
    ''')
    a(f'''
    v_lshlrev_b32 {vAtr}, 3, v252
    v_lshrrev_b32 v251, 1, v253
    v_lshl_add_u32 {vAtr}, v251, 2, {vAtr}
    v_and_b32 v251, 1, v253
    v_add_u32 {vAtr}, v251, {vAtr}
    v_and_b32 v251, 2, v254
    v_add_u32 {vAtr}, v251, {vAtr}
    v_lshlrev_b32 {vAtr}, 4, {vAtr}
    v_and_b32 v251, 1, v254
    v_lshl_add_u32 {vAtr}, v251, 3, {vAtr}
    ''')
    a(f'''
    v_and_b32 v250, 15, v1
    v_lshrrev_b32 v251, 1, v252
    v_lshlrev_b32 {vKp}, 10, v251
    v_lshl_add_u32 {vKp}, v250, 4, {vKp}
    v_mul_u32_u24 {vQw}, {MS}, v251
    v_and_b32 v251, 1, v252
    v_lshl_add_u32 {vKp}, v251, 9, {vKp}
    v_mul_u32_u24 v251, {4*RS}, v251
    v_add_u32 {vQw}, v251, {vQw}
    v_lshl_add_u32 {vQw}, v250, 2, {vQw}
    s_lshl_b32 s55, {sW}, 6
    s_add_u32 s55, s55, {QK}
    v_add_u32 {vQw}, s55, {vQw}
    v_and_b32 v251, 7, v1
    v_mul_u32_u24 {vQr}, {RS}, v251
    v_lshl_add_u32 {vQr}, v252, 4, {vQr}
    v_add_u32 {vQr}, {QK}, {vQr}
    s_mul_i32 s55, {sW}, 2560
    v_add_u32 {vMp}, s55, {vLin}
    v_and_b32 {vMp2}, 31, v1
    v_lshlrev_b32 {vMp2}, 4, {vMp2}
    s_add_u32 s55, s55, 2048
    v_add_u32 {vMp2}, s55, {vMp2}
    s_lshr_b32 s55, {sW}, 1
    s_lshl_b32 s55, s55, 10
    s_and_b32 s56, {sW}, 1
    s_lshl_b32 s56, s56, 7
    s_add_u32 s55, s55, s56
    v_add_u32 {vO}, s55, {vLin}
    v_mov_b32 v251, {R.HUGE}
    v_cmp_gt_u32 vcc, 8, v250
    v_cndmask_b32 {vO}, v251, {vO}, vcc
    v_lshlrev_b32 {vL8}, 3, v1
    v_lshrrev_b32 v251, 5, v1
    v_mul_u32_u24 {vKr}, {RS}, v251
    v_and_b32 v251, 31, v1
    v_lshl_add_u32 {vKr}, v251, 3, {vKr}
    s_mul_i32 s55, {sW}, {2*RS}
    s_add_u32 s55, s55, {QK + MS}
    v_add_u32 {vKr}, s55, {vKr}
    s_mov_b32 {sCe}, {R.CEXP}
    s_mov_b32 s76, -1
    s_mov_b32 s77, 0
    s_mov_b32 s78, 0
    s_mov_b32 s79, -1
    ''')
    a(f's_lshl_b32 s55, {sH}, 2\n s_add_u32 s55, s55, {PKV}')
    flag_addr(vFl, 4, 's55')
    src_voff('v111', 64, 8192, 'v251')
    a(f's_lshl_b32 s58, {sH}, 8\n s_lshl_b32 s55, {sW}, 6\n s_add_u32 s58, s58, s55')
    chunks = []
    for m, (srd_, t0, t1) in enumerate(((SA, Q0, Q1), (SB, K0, None), (SC, V0, V1))):
        for ks in range(10):
            reads = []
            for ti, t in enumerate((t0, t1)):
                for rb in range(4):
                    dst = wr(W(t, ks) + 2 * rb, 2) if t is not None else vr(WT + 2 * rb, 2)
                    reads.append((dst, (16 * (rb // 2) + 4 * (rb % 2)) * 64 + 32 * ti))
            post = None
            if t1 is None:
                def post(ks=ks):
                    a(f'ds_write_b128 {vK1}, {vr(WT,4)} offset:{ks*2048}\n ds_write_b128 {vK1}, {vr(WT+4,4)} offset:{ks*2048+1024}\n s_waitcnt lgkmcnt(0)')
            chunks.append(dict(srd=srd_, vsrc='v111', n=4, step=16 * 8192, reads=reads, post=post,
                               setoff=f's_add_u32 s56, s58, {ks*64*8192}'))
    load_weights(chunks, 4, 4096, sStage, 'v110')
    wait_start(f'v{A}', vT, 0x50)
    R.chain_mode(sMode, vT)
    a('s_barrier')

    def kv_thr(item):
        a(f'''
        s_and_b32 s57, {item}, 63
        s_add_u32 s57, s57, 1
        s_cmp_lt_u32 {item}, 128
        s_cselect_b32 s57, s57, 0
        s_min_u32 s59, {item}, 127
        s_lshr_b32 s58, s59, 6
        s_lshl_b32 s58, s58, 14
        ''')
    def kv_spin(code):
        L, D = a.newlabel('Lkv'), a.newlabel('Lkvd')
        a.label(L)
        a(f'v_cmp_gt_i32 vcc, s57, {vT}\n s_cbranch_vccz {D}')
        spin_guard(code, 1)
        a(f'buffer_load_dword {vT}, {vFl}, {WS}, s58 offen sc1\n s_waitcnt vmcnt(0)\n s_branch {L}')
        a.label(D)
    def kv_dma(sbuf):
        a(f'''
        s_lshl_b32 s59, s59, 5
        s_add_u32 s59, s59, {sH}
        s_lshl_b32 s59, s59, 14
        s_lshl_b32 s55, {sW}, 12
        s_add_u32 s59, s59, s55
        s_add_u32 s59, s59, {KVB}
        s_add_u32 m0, {sbuf}, s55
        ''')
        for i in range(4):
            a(f'buffer_load_dwordx4 {vLin}, {WS}, s59 offen offset:{i*1024} sc1 lds')
    def poll_loads():
        a(f'buffer_load_dwordx4 {vr(A,4)}, {vMp}, {WS}, {sMx} offen sc1\n buffer_load_dwordx4 {vr(A+4,4)}, {vMp}, {WS}, {sMx} offen offset:1024 sc1\n buffer_load_dwordx4 {vr(A+8,4)}, {vMp2}, {WS}, {sMx} offen sc1')
    def set_mx(item):
        a(f's_min_u32 s55, {item}, 127\n s_mul_i32 {sMx}, s55, {MEMX_ITEM}\n s_mul_i32 s55, {sG}, 10240\n s_add_u32 {sMx}, {sMx}, s55\n s_add_u32 {sMx}, {sMx}, {MEMX}')
    def publish():
        a(f'v_mov_b32 v{X+5}, {sPmVal}\n buffer_store_dword v{X+5}, off, {WS}, {sPmOff} sc1\n s_mov_b32 {sPend}, 0')
    def k1_read(ks, lg):
        s = WT + 8 * (ks % 3)
        lg.issue(f'ds_read_b128 {vr(s,4)}, {vK1} offset:{ks*2048}')
        return lg.issue(f'ds_read_b128 {vr(s+4,4)}, {vK1} offset:{ks*2048+1024}')

    a(f's_mov_b32 {sNxt}, 0\n s_mov_b32 {sB1}, {KVX}\n s_mov_b32 {sB2}, {KVX+16384}\n s_mov_b32 {sB0}, {KVX+32768}\n s_mov_b32 {sPend}, 0\n s_mov_b32 {sPmOff}, 0\n s_mov_b32 {sPmVal}, 0')
    R.next_task(sNx2, sNxt)
    for item, buf in ((sNxt, sB1), (sNx2, sB2)):
        kv_thr(item); a(f'v_mov_b32 {vT}, -1'); kv_spin(0x51); kv_dma(buf)
    lg0 = Cnt('lgkmcnt', 15)
    for ks in range(3): k1_read(ks, lg0)
    for i in range(24): a(f'v_mov_b32 v{AQ+i}, 0')
    set_mx(sNxt)

    a.label('L_head_poll')
    poll_loads()
    a(f's_waitcnt vmcnt(0)\n s_cmp_eq_u32 {sPend}, 0\n s_cbranch_scc1 L_head_chk')
    publish()
    a.label('L_head_chk')
    a(f'v_max3_u32 {vT}, v{A}, v{A+1}, v{A+2}\n v_max3_u32 v{X}, v{A+3}, v{A+4}, v{A+5}\n v_max3_u32 {vT}, {vT}, v{A+6}, v{A+7}\n v_max3_u32 v{X}, v{X}, v{A+8}, v{A+9}\n v_max3_u32 {vT}, {vT}, v{A+10}, v{A+11}\n v_max_u32 {vT}, {vT}, v{X}')
    a(f'v_cmp_eq_u32 vcc, -1, {vT}\n s_cbranch_vccz L_head_task')
    spin_guard(0x52, 0)
    a('s_branch L_head_poll')

    a.label('L_head_task')
    a(f'ds_write_b128 {vMp}, {vr(A,4)}\n ds_write_b128 {vMp}, {vr(A+4,4)} offset:1024\n ds_write_b128 {vMp2}, {vr(A+8,4)}')
    a(f's_mov_b32 {sCur}, {sNxt}\n s_mov_b32 {sNxt}, {sNx2}\n s_mov_b32 s59, {sB0}\n s_mov_b32 {sB0}, {sB1}\n s_mov_b32 {sB1}, {sB2}\n s_mov_b32 {sB2}, s59')
    a('s_waitcnt lgkmcnt(0)\n s_barrier')
    lg = Cnt('lgkmcnt', 15)
    ta, tk = {}, {0: 0, 1: 0, 2: 0}
    def a_read(ks):
        lg.issue(f'ds_read_b64_tr_b16 {vr(A+4*ks,2)}, {vAtr} offset:{ks*1024}')
        ta[ks] = lg.issue(f'ds_read_b64_tr_b16 {vr(A+4*ks+2,2)}, {vAtr} offset:{ks*1024+512}')
    for ks in range(4): a_read(ks)
    sal = []
    class Cap:
        def __enter__(s): s.n = len(a.items); return s
        def __exit__(s, *e): s.got = a.items[s.n:]; del a.items[s.n:]
    with Cap() as cp:
        R.next_task(sNx2, sNxt)
        set_mx(sNxt)
        a(f's_lshl_b32 {sO}, {sCur}, 16\n s_lshl_b32 s55, {sH}, 11\n s_add_u32 {sO}, {sO}, s55')
        a(f's_lshl_b32 {sKm}, {sCur}, 5\n s_add_u32 {sKm}, {sKm}, {sH}\n s_lshl_b32 {sKm}, {sKm}, 12\n s_lshl_b32 s55, {sW}, 9\n s_add_u32 {sKm}, {sKm}, s55\n s_add_u32 {sKm}, {sKm}, {KM}')
        a(f'v_add_u32 {vKx}, {sB0}, {vKp}\n s_lshl_b32 s55, {sW}, 11\n s_add_u32 s55, s55, {sB0}\n v_add_u32 {vVx}, s55, {vKp}')
        kv_thr(sNx2)
    sal = cp.got
    def fill(n):
        for _ in range(n):
            if sal: a.items.append(sal.pop(0))
    for ks in range(10):
        lg.wait(max(ta[ks], tk[ks]))
        fa = vr(A + 4 * ks, 4)
        a(f'{SMF} {vr(AQ+12,4)}, {fa}, {vr(WT+8*(ks%3),8)}, {vIdx}')
        if ks + 4 < 10: a_read(ks + 4)
        else: fill(2)
        a(f'{SMF} {vr(AQ,4)}, {fa}, {wr(W(Q0,ks),8)}, {vIdx}')
        fill(2)
        a(f'{SMF} {vr(AQ+8,4)}, {fa}, {wr(W(K0,ks),8)}, {vIdx}')
        if ks + 3 < 10: tk[ks + 3] = k1_read(ks + 3, lg)
        else: fill(2)
        a(f'{SMF} {vr(AQ+4,4)}, {fa}, {wr(W(Q1,ks),8)}, {vIdx}')
        fill(2)
    fill(99)
    vq = [(t, ks) for ks in range(10) for t in (V0, V1)]
    def vs(n=1):
        for _ in range(n):
            t, ks = vq.pop(0)
            a(f'{SMF} {vr(AV+4*(t-V0),4)}, {vr(A+4*ks,4)}, {wr(W(t,ks),8)}, {vIdx}')
    KX1, KMF, KX2, QF, VX = WT, A, A + 16, AQ, A + 32
    S1, S0, S2 = WT + 16, WT + 20, X
    tx1 = []
    vs()
    for j in range(4): tx1.append(lg.issue(f'ds_read_b128 {vr(KX1+4*j,4)}, {vKx} offset:{j*2048}'))
    vs(2)
    for r in range(4): a(f'v_permlane32_swap_b32 v{AQ+r}, v{AQ+8+r}')
    vs()
    for r in range(4): a(f'v_permlane32_swap_b32 v{AQ+4+r}, v{AQ+12+r}')
    vs()
    for r in range(4): a(f'v_add_f32 v{AQ+r}, v{AQ+r}, v{AQ+8+r}')
    vs()
    for r in range(4): a(f'v_add_f32 v{AQ+4+r}, v{AQ+4+r}, v{AQ+12+r}')
    vs()
    for r in range(4):
        a(f'v_cvt_pk_bf16_f32 v{PKD+r}, v{AQ+r}, v{AQ+4+r}')
    vs()
    for r in range(4): tw = lg.issue(f'ds_write_b32 {vQw}, v{PKD+r} offset:{r*RS}')
    vs(2)
    tx2 = {}
    tx2[0] = lg.issue(f'ds_read_b128 {vr(KX2,4)}, {vKx} offset:256'); vs(2)
    tx2[1] = lg.issue(f'ds_read_b128 {vr(KX2+4,4)}, {vKx} offset:{2048+256}'); vs(2)
    tx2[2] = lg.issue(f'ds_read_b128 {vr(KX2+8,4)}, {vKx} offset:{4096+256}')
    a(f's_cmp_eq_u32 {sPend}, 0\n s_cbranch_scc1 L_head_np\n s_waitcnt vmcnt(4)')
    publish()
    a.label('L_head_np')
    lg.wait(tw)
    a('s_barrier')
    tq, tm = [], []
    for j in range(4): tq.append(lg.issue(f'ds_read_b128 {vr(QF+4*j,4)}, {vQr} offset:{j*64}'))
    for j in range(4): tm.append(lg.issue(f'ds_read_b128 {vr(KMF+4*j,4)}, {vQr} offset:{MS+j*64}'))
    vs(2)
    tx2[3] = lg.issue(f'ds_read_b128 {vr(KX2+12,4)}, {vKx} offset:{6144+256}')
    tkm = lg.issue(f'ds_read_b64 {vr(X+4,2)}, {vKr}')
    vs(4)
    assert not vq
    for t in range(2): tv = lg.issue(f'ds_read_b128 {vr(VX+4*t,4)}, {vVx} offset:{8192+t*256}')
    for j in range(4):
        lg.wait(tq[j])
        a(f'{M32} {vr(S1,4)}, {vr(KX1+4*j,4)}, {vr(QF+4*j,4)}, {vr(S1,4) if j else 0}')
    for j in range(4):
        lg.wait(tm[j])
        a(f'{M32} {vr(S0,4)}, {vr(KMF+4*j,4)}, {vr(QF+4*j,4)}, {vr(S0,4) if j else 0}')
        a(f'v_permlane32_swap_b32 v{AV+j}, v{AV+4+j}')
    VM, ONE, P12, P0A, P0B, MX, T2 = WT, WT + 4, WT + 8, WT + 12, WT + 14, f'v{WT+2}', f'v{WT+3}'
    for j in range(4):
        lg.wait(tx2[j])
        a(f'{M32} {vr(S2,4)}, {vr(KX2+4*j,4)}, {vr(QF+4*j,4)}, {vr(S2,4) if j else 0}')
        a(f'v_add_f32 v{AV+j}, v{AV+j}, v{AV+4+j}')
    a(f'v_cvt_pk_bf16_f32 v{VM}, v{AV}, v{AV+1}\n v_cvt_pk_bf16_f32 v{VM+1}, v{AV+2}, v{AV+3}')
    a(f'v_max3_f32 {MX}, v{S1}, v{S1+1}, v{S1+2}\n v_max3_f32 {MX}, {MX}, v{S1+3}, v{S0}\n v_max3_f32 {T2}, v{S0+1}, v{S0+2}, v{S0+3}')
    for i in range(4): a(f'v_mov_b32 v{ONE+i}, 0x3f803f80')
    a(f'v_max3_f32 {MX}, {MX}, v{S2}, v{S2+1}\n v_max3_f32 {T2}, {T2}, v{S2+2}, v{S2+3}\n v_max_f32 {MX}, {MX}, {T2}')
    def z(r): a(f'v_mov_b32 v{r}, 0')
    a(f'v_mov_b32 {T2}, {MX}'); z(AQ); z(AQ + 1)
    a(f'v_permlane32_swap_b32 {MX}, {T2}\n v_max_f32 {MX}, {MX}, {T2}\n v_mov_b32 {T2}, {MX}'); z(AQ + 2); z(AQ + 3)
    a(f'v_permlane16_swap_b32 {MX}, {T2}\n v_max_f32 {MX}, {MX}, {T2}\n v_mul_f32 {MX}, {sCe}, {MX}')
    E = [S1 + i for i in range(4)] + [S2 + i for i in range(4)] + [S0 + i for i in range(4)]
    for e in E: a(f'v_fma_f32 v{e}, v{e}, {sCe}, -{MX}')
    for e in E[:8]: a(f'v_exp_f32 v{e}, v{e}')
    for e in E[8:10]: a(f'v_exp_f32 v{e}, v{e}')
    for i in range(4): a(f'v_cvt_pk_bf16_f32 v{P12+i}, v{E[2*i]}, v{E[2*i+1]}')
    for e in E[10:]: a(f'v_exp_f32 v{e}, v{e}')
    O0, O1, SUM = A + 16, A + 20, A + 24
    lg.wait(tv)
    a(f'{M32} {vr(SUM,4)}, {vr(ONE,4)}, {vr(P12,4)}, 0')
    a(f'v_cvt_pk_bf16_f32 v{S1}, v{S0}, v{S0+1}\n v_cvt_pk_bf16_f32 v{S1+1}, v{S0+2}, v{S0+3}')
    a(f'{M32} {vr(O0,4)}, {vr(VX,4)}, {vr(P12,4)}, 0')
    a(f'v_cndmask_b32 v{P0A}, 0, v{S1}, {sLo}\n v_cndmask_b32 v{P0A+1}, 0, v{S1+1}, {sLo}')
    a(f'{M32} {vr(O1,4)}, {vr(VX+4,4)}, {vr(P12,4)}, 0')
    a(f'v_cndmask_b32 v{P0B}, 0, v{S1}, {sHi}\n v_cndmask_b32 v{P0B+1}, 0, v{S1+1}, {sHi}')
    a(f'{M16} {vr(SUM,4)}, {vr(ONE,2)}, {vr(P0A,2)}, {vr(SUM,4)}')
    a(f'{M16} {vr(O0,4)}, {vr(VM,2)}, {vr(P0A,2)}, {vr(O0,4)}')
    a(f'{M16} {vr(O1,4)}, {vr(VM,2)}, {vr(P0B,2)}, {vr(O1,4)}')
    a(f'buffer_load_dword {vT}, {vFl}, {WS}, s58 offen sc1')
    poll_loads()
    a(f's_add_u32 s55, {sO}, {OL}\n s_add_u32 s56, {sO}, {OR_}')
    a(f'v_rcp_f32 v{SUM}, v{SUM}')
    for i in range(8): a(f'v_mul_f32 v{O0+i}, v{SUM}, v{O0+i}')
    OP = A + 28
    for i in range(4): a(f'v_cvt_pk_bf16_f32 v{OP+i}, v{O0+2*i}, v{O0+2*i+1}')
    for i in range(4): a(f'v_min_u32 v{OP+i}, -2, v{OP+i}')
    a(f'buffer_store_dwordx4 {vr(OP,4)}, {vO}, {WS}, s56 offen sc1')
    R.local_store(f'buffer_store_dwordx4 {vr(OP,4)}, {vO}, {WS}, s55 offen', sMode)
    a(f'buffer_store_dwordx2 {vr(X+4,2)}, {vL8}, {WS}, {sKm} offen sc1\n buffer_store_dwordx2 {vr(VM,2)}, {vL8}, {WS}, {sKm} offen offset:2048 sc1')
    a(f'''
    s_and_b32 {sPmVal}, {sCur}, 63
    s_add_u32 {sPmVal}, {sPmVal}, 1
    s_lshr_b32 {sPmOff}, {sCur}, 6
    s_lshl_b32 {sPmOff}, {sPmOff}, 5
    s_add_u32 {sPmOff}, {sPmOff}, {sH}
    s_lshl_b32 {sPmOff}, {sPmOff}, 2
    s_add_u32 {sPmOff}, {sPmOff}, {sW}
    s_add_u32 {sPmOff}, {sPmOff}, {PM}
    s_lshl_b32 {sPmOff}, {sPmOff}, 7
    s_mov_b32 {sPend}, 1
    ''')
    for ks in range(3): k1_read(ks, lg)
    for i in range(4, 24): z(AQ + i)
    a(f's_cmp_ge_u32 {sNxt}, 128\n s_cbranch_scc1 L_head_fin\n s_waitcnt vmcnt(4)')
    kv_spin(0x53)
    kv_dma(sB2)
    a('s_branch L_head_chk')
    a.label('L_head_fin')
    a('s_waitcnt vmcnt(0)')
    publish()
    a('s_endpgm')
```

```python
MB = 1 << 20
WS_BYTES = 256 * MB
FLAGS = 0
PAIR = 128 * 1024
ZERO_BYTES = 1 * MB
MEMX = 1 * MB
MEMX_ITEM = 20480
OL = 4 * MB
OR_ = 12 * MB
XB = 20 * MB
XSZ = 2621440
XITEM = 40960
KM = 32 * MB
HB = 48 * MB
HITEM = 114688
QB = 64 * MB
KVB = 96 * MB
OB = 160 * MB
PXIN = 0
PX1 = 80
PH = 160
PO = 224
PQ = 288
PKV = 416
PM = 672
KNAME = 'interleave_layers__memory_aug_recurrent_mem_tr__dense_activation_silu__prompt_kernel'
```

```python
from gen import *
import struct
def f2u(x): return struct.unpack('<I', struct.pack('<f', x))[0]
CEXP = f2u(128 ** -0.5 * 1.4426950408889634)
HUGE = 0x7ffffff0

def relayout():
    DONE = 'L_rl_done'
    sKs = 's60'
    a(f's_sub_u32 s55, {sT}, 16\n s_lshl_b32 s55, s55, 2\n s_add_u32 s55, s55, {sW}\n s_lshl_b32 {sKs}, {sC}, 5\n s_add_u32 {sKs}, {sKs}, s55')
    a(f's_cmp_ge_u32 {sKs}, 40\n s_cbranch_scc1 {DONE}')
    srd(SB, P_X, 2621440)
    a(f'''
    v_and_b32 v2, 31, v1
    v_mul_u32_u24 v2, 1280, v2
    v_lshrrev_b32 v3, 5, v1
    v_lshl_add_u32 v2, v3, 4, v2
    v_lshlrev_b32 v3, 4, v1
    s_lshl_b32 s61, {sKs}, 5
    s_lshl_b32 s62, {sKs}, 10
    s_add_u32 s62, s62, {XB}
    s_add_u32 s63, {sKs}, {PXIN}
    s_lshl_b32 s63, s63, 7
    s_mov_b32 s64, 0
    L_rl_loop:
    ''')
    for i in range(8):
        a(f'buffer_load_dwordx4 {vr(8+4*i,4)}, v2, {SB}, s61 offen\n s_add_u32 s61, s61, {XITEM}')
    for i in range(8):
        a(f's_waitcnt vmcnt(7)\n buffer_store_dwordx4 {vr(8+4*i,4)}, v3, {WS}, s62 offen sc1\n s_add_u32 s62, s62, {XITEM}')
    a('s_add_u32 s64, s64, 8\n s_cmp_lg_u32 s64, 8\n s_cbranch_scc1 L_rl_nw')
    wait_start('v4', 'v5', 0x20)
    a(f'''
    L_rl_nw:
    v_mov_b32 v4, s64
    s_waitcnt vmcnt(0)
    buffer_store_dword v4, off, {WS}, s63 sc1
    s_waitcnt vmcnt(0)
    s_cmp_lt_u32 s64, 64
    s_cbranch_scc1 L_rl_loop
    ''')
    a.label(DONE)

def xmax(m, t, op='v_max_f32', both=True):
    a(f'v_mov_b32 {t}, {m}\n v_permlane32_swap_b32 {m}, {t}\n {op} {m}, {m}, {t}')
    if both: a(f'v_mov_b32 {t}, {m}\n v_permlane16_swap_b32 {m}, {t}\n {op} {m}, {m}, {t}')

def role_att():
    a.label('L_role_att')
    relayout()
    wait_start('v4', 'v5', 0x21)
    vLin, vFl, vThr, vT, vKm, vVm, vAdd, M, T2 = 'v2', 'v3', 'v4', 'v5', 'v6', 'v7', 'v8', 'v9', 'v10'
    P, PMm, KMf, VMf, S, SM, BIAS, O, PK = 12, 20, 24, 56, 64, 80, 96, 112, 176
    aK, aQ, aV = 0, 32, 64
    sH, sS, sKV, sQ, sKM, sO, sFlag, sCe = 's60', 's61', 's62', 's63', 's64', 's65', 's66', 's67'
    a(f'''
    s_and_b32 s55, {sH}, 31
    s_lshl_b32 s56, {sC}, 11
    s_add_u32 s56, s56, s55
    s_lshl_b32 {sKV}, s56, 14
    s_add_u32 {sKV}, {sKV}, {KVB}
    s_lshl_b32 {sQ}, s56, 13
    s_add_u32 {sO}, {sQ}, {OB}
    s_add_u32 {sQ}, {sQ}, {QB}
    s_lshl_b32 {sKM}, s56, 12
    s_add_u32 {sKM}, {sKM}, {KM}
    s_add_u32 {sFlag}, {sH}, {PO}
    s_lshl_b32 {sFlag}, {sFlag}, 7
    s_mov_b32 {sCe}, {CEXP}
    v_lshlrev_b32 {vLin}, 4, v1
    ''')
    a(f'''
    s_lshl_b32 s55, {sH}, 2
    s_add_u32 s56, s55, {PM}
    s_add_u32 s57, s55, {PKV}
    s_lshr_b32 s55, {sH}, 1
    s_lshl_b32 s55, s55, 2
    s_add_u32 s55, s55, {PQ}
    v_mov_b32 {vFl}, s55
    v_mov_b32 {vT}, s57
    v_cmp_gt_u32 vcc, 8, v1
    v_cndmask_b32 {vFl}, {vFl}, {vT}, vcc
    v_mov_b32 {vT}, s56
    v_cmp_gt_u32 vcc, 4, v1
    v_cndmask_b32 {vFl}, {vFl}, {vT}, vcc
    v_cndmask_b32 {vAdd}, 2, 1, vcc
    v_and_b32 {vT}, 3, v1
    v_add_u32 {vFl}, {vFl}, {vT}
    v_lshlrev_b32 {vFl}, 7, {vFl}
    v_and_b32 {vKm}, 7, v1
    v_lshlrev_b32 {vKm}, 8, {vKm}
    v_lshrrev_b32 {vT}, 5, v1
    v_lshl_add_u32 {vKm}, {vT}, 4, {vKm}
    v_lshlrev_b32 {vVm}, 7, {vT}
    v_bfe_u32 {M}, v1, 4, 1
    v_lshl_add_u32 {vVm}, {M}, 8, {vVm}
    v_and_b32 {M}, 15, v1
    v_lshl_add_u32 {vVm}, {M}, 3, {vVm}
    v_and_b32 {M}, 31, v1
    v_lshlrev_b32 {vT}, 2, {vT}
    v_sub_u32 {M}, {M}, {vT}
    v_mov_b32 {T2}, 0xf149f2ca
    ''')
    for r in range(16):
        a(f'v_cmp_le_i32 vcc, {8*(r//4)+r%4}, {M}\n v_cndmask_b32 v{BIAS+r}, {T2}, 0, vcc')
    def ld8(dst, soff, extra):
        a(f's_add_u32 s56, {soff}, {extra}\n s_add_u32 s57, {soff}, {extra+4096}')
        for i in range(8):
            a(f'buffer_load_dwordx4 {ar(dst+4*i,4)}, {vLin}, {WS}, {"s56" if i<4 else "s57"} offen offset:{(i%4)*1024} sc1')
    a(f'v_subrev_u32 {vThr}, 1, {vAdd}\n s_mov_b32 {sS}, 0')
    poll(vFl, vThr, vT, 0x22, sleep=4)
    ld8(aK, sKV, 0); ld8(aQ, sQ, 0); ld8(aV, sKV, 8192)
    a('s_waitcnt vmcnt(0)')
    a.label('L_att_loop')
    for i in range(8):
        a(f'v_mfma_f32_32x32x16_bf16 {vr(S,16)}, {ar(aK+4*i,4)}, {ar(aQ+4*i,4)}, {vr(S if i else BIAS,16)}')
    a(f'v_add_u32 {vThr}, {sS}, {vAdd}\n v_min_u32 {vThr}, 64, {vThr}')
    poll(vFl, vThr, vT, 0x23)
    for i in range(8):
        a(f'buffer_load_dwordx4 {vr(KMf+4*i,4)}, {vKm}, {WS}, {sKM} offen offset:{i*32} sc1')
    for j in range(4):
        a(f'buffer_load_dwordx2 {vr(VMf+2*j,2)}, {vVm}, {WS}, {sKM} offen offset:{2048+j*512} sc1')
    a(f'v_max3_f32 {M}, v{S}, v{S+1}, v{S+2}')
    for r in range(3, 15, 2): a(f'v_max3_f32 {M}, {M}, v{S+r}, v{S+r+1}')
    a(f'v_max_f32 {M}, {M}, v{S+15}')
    for i in range(8):
        a(f's_waitcnt vmcnt({11-i})')
        a(f'v_mfma_f32_32x32x16_bf16 {vr(SM,16)}, {vr(KMf+4*i,4)}, {ar(aQ+4*i,4)}, {vr(SM,16) if i else 0}')
    a(f's_add_u32 {sKV}, {sKV}, {32*16384}\n s_add_u32 {sQ}, {sQ}, {32*8192}\n s_add_u32 {sKM}, {sKM}, {32*4096}')
    a('s_waitcnt vmcnt(0)')
    ld8(aK, sKV, 0); ld8(aQ, sQ, 0)
    a(f'v_max3_f32 {M}, {M}, v{SM}, v{SM+1}\n v_max3_f32 {M}, {M}, v{SM+2}, v{SM+3}')
    xmax(M, T2, both=False)
    a(f'v_mul_f32 {M}, {sCe}, {M}')
    E = [S + r for r in range(16)] + [SM + r for r in range(4)]
    for e in E: a(f'v_fma_f32 v{e}, v{e}, {sCe}, -{M}')
    for e in E: a(f'v_exp_f32 v{e}, v{e}')
    a(f'v_add_f32 {M}, v{E[0]}, v{E[1]}\n v_add_f32 {T2}, v{E[2]}, v{E[3]}')
    for k in range(4, 20, 2): a(f'v_add_f32 {M}, {M}, v{E[k]}\n v_add_f32 {T2}, {T2}, v{E[k+1]}')
    a(f'v_add_f32 {M}, {M}, {T2}')
    xmax(M, T2, 'v_add_f32', both=False)
    a(f'v_rcp_f32 {M}, {M}')
    for e in E: a(f'v_mul_f32 v{e}, {M}, v{e}')
    for gp in range(2):
        for i in range(4):
            x = S + 4 * gp + 8 * (i // 2) + 2 * (i % 2)
            a(f'v_cvt_pk_bf16_f32 v{P+4*gp+i}, v{x}, v{x+1}')
    a(f'v_cvt_pk_bf16_f32 v{PMm}, v{SM}, v{SM+1}\n v_cvt_pk_bf16_f32 v{PMm+1}, v{SM+2}, v{SM+3}')
    a(f's_add_u32 s58, {sO}, 4096')
    def outp(j):
        for gp in range(2):
            o = PK + 8 * (j % 2) + 4 * gp
            for i in range(4):
                x = O + 16 * j + 4 * gp + 8 * (i // 2) + 2 * (i % 2)
                a(f'v_cvt_pk_bf16_f32 v{o+i}, v{x}, v{x+1}')
            a(f'buffer_store_dwordx4 {vr(o,4)}, {vLin}, {WS}, {sO if j<2 else "s58"} offen offset:{((j%2)*2+gp)*1024} sc1')
    for j in range(4):
        o = vr(O + 16 * j, 16)
        a(f'v_mfma_f32_32x32x16_bf16 {o}, {ar(aV+8*j,4)}, {vr(P,4)}, 0')
        a(f'v_mfma_f32_32x32x16_bf16 {o}, {ar(aV+8*j+4,4)}, {vr(P+4,4)}, {o}')
        a(f'v_mfma_f32_32x32x8_bf16 {o}, {vr(VMf+2*j,2)}, {vr(PMm,2)}, {o}')
        if j >= 1: outp(j - 1)
    outp(3)
    ld8(aV, sKV, 8192)
    a(f's_add_u32 {sS}, {sS}, 1\n s_add_u32 {sO}, {sO}, {32*8192}\n v_mov_b32 {vT}, {sS}\n s_waitcnt vmcnt(8)')
    a(f'buffer_store_dword {vT}, off, {WS}, {sFlag} sc1')
    a(f's_cmp_lt_u32 {sS}, 64\n s_cbranch_scc1 L_att_loop\n s_endpgm')

def role_red(kind):
    a.label(f'L_role_{kind}')
    NK = 28 if kind == 'ff2' else 32
    def W(t, k): return (k * 2 + t) * 4
    vLin, vFl, vThr, vT, vAdd, vRw, vRr, vOut = 'v2', 'v3', 'v4', 'v5', 'v6', 'v7', 'v8', 'v9'
    RES, PR, ACC, B, RD = 12, 16, (24, 40), 64, 192
    sJ, sS, sIn, sRes, sOut, sFlag, sPair, sStage, sOstr, sRow = 's60', 's61', 's62', 's63', 's64', 's65', 's66', 's67', 's68', 's69'
    base = {'wos': 0, 'wor': 10, 'ff2': 20}[kind]
    a(f's_sub_u32 {sJ}, {sT}, {base}')
    if kind == 'ff2':
        srd(SA, P_W2, 2211840)
        a(f's_mul_i32 {sRow}, {sW}, {448*1280}')
        a(f's_mul_i32 {sIn}, {sC}, {64*HITEM}\n s_mul_i32 s55, {sW}, {28*1024}\n s_add_u32 {sIn}, {sIn}, s55\n s_add_u32 {sIn}, {sIn}, {HB}')
        istr = HITEM
    else:
        kh = 0 if kind == 'wos' else 1
        srd(SA, P_WO, 5242880)
        a(f's_mul_i32 {sRow}, {sW}, {512*1280}\n s_add_u32 {sRow}, {sRow}, {kh*2048*1280}')
        a(f's_lshl_b32 {sIn}, {sC}, 24\n s_lshl_b32 s55, {sW}, 15\n s_add_u32 {sIn}, {sIn}, s55\n s_add_u32 {sIn}, {sIn}, {OB + kh*16*8192}')
        istr = 32 * 8192
    a(f's_lshl_b32 s55, {sJ}, 7\n s_add_u32 {sRow}, {sRow}, s55')
    lane_fields()
    a(f's_mul_i32 {sStage}, {sW}, 40960')
    a(f'''
    v_lshrrev_b32 v250, 1, v252
    v_lshl_add_u32 v250, v250, 2, v253
    v_lshlrev_b32 v250, 7, v250
    v_and_b32 v251, 1, v252
    v_lshl_add_u32 v250, v251, 5, v250
    v_lshl_add_u32 v250, v254, 3, v250
    v_add_u32 v250, {sStage}, v250
    ''')
    src_voff('v249', 128, 1280, 'v251')
    chunks = []
    for ch in range(NK // 4):
        reads = []
        for kk in range(4):
            for t in range(2):
                for rd in range(2):
                    reads.append((ar(W(t, ch * 4 + kk) + 2 * rd, 2), (32 * (kk // 2) + 8 * (kk % 2) + 16 * rd) * 128 + 64 * t))
        chunks.append(dict(srd=SA, vsrc='v249', n=8, step=8 * 1280, reads=reads, setoff=f's_add_u32 s56, {sRow}, {ch*64*1280}'))
    load_weights(chunks, 5, 8192, sStage, 'v250')
    a(f'v_lshlrev_b32 {vLin}, 4, v1')
    a(f's_lshl_b32 s58, {sJ}, 2\n s_add_u32 s58, s58, {sW}')
    if kind == 'ff2':
        a(f's_lshl_b32 s55, {sC}, 5\n s_mul_i32 s56, {sW}, 7\n s_add_u32 s55, s55, s56\n s_add_u32 s55, s55, {PH}')
        flag_addr(vFl, 7, 's55'); a(f'v_mov_b32 {vAdd}, 1')
        resb = 2
    else:
        a(f's_lshl_b32 s55, {sC}, 5\n s_lshl_b32 s56, {sW}, 2\n s_add_u32 s55, s55, s56\n s_add_u32 s55, s55, {PO + kh*16}')
        flag_addr(vFl, 4, 's55'); a(f'v_mov_b32 {vAdd}, 1')
        if kind == 'wos':
            a(f's_mul_i32 s55, {sC}, 40\n s_add_u32 s55, s55, s58\n s_add_u32 s55, s55, {PX1}\n s_lshl_b32 s55, s55, 7\n v_mov_b32 {vT}, s55')
            a(f'v_cmp_gt_u32 vcc, 4, v1\n v_cndmask_b32 {vFl}, {vT}, {vFl}, vcc\n v_cndmask_b32 {vAdd}, -3, {vAdd}, vcc')
        resb = 0
        a(f's_mul_i32 {sPair}, {sC}, 10\n s_add_u32 {sPair}, {sPair}, {sJ}\n s_lshl_b32 {sPair}, {sPair}, 15\n s_lshl_b32 s55, {sW}, 11\n s_add_u32 {sPair}, {sPair}, s55\n s_add_u32 {sPair}, {sPair}, {PAIR}')
    a(f's_add_u32 s55, {sC}, {resb}\n s_mul_i32 {sRes}, s55, {XSZ}\n s_lshl_b32 s55, s58, 10\n s_add_u32 {sRes}, {sRes}, s55\n s_add_u32 {sRes}, {sRes}, {XB}')
    if kind == 'wor':
        a(f's_add_u32 {sOut}, {sRes}, {2*XSZ}')
        a(f's_mul_i32 {sFlag}, {sC}, 40\n s_add_u32 {sFlag}, {sFlag}, s58\n s_add_u32 {sFlag}, {sFlag}, {PX1}\n s_lshl_b32 {sFlag}, {sFlag}, 7')
    if kind == 'ff2':
        srd(SC, 48, WS_BYTES)
        a(f's_sub_u32 {sOut}, {sRes}, {XSZ}\n v_mov_b32 {vOut}, {vLin}\n s_add_u32 {sFlag}, s58, {PXIN+40}')
        a(f's_cmp_eq_u32 {sC}, 0\n s_cbranch_scc1 L_ff2_c0')
        srd(SC, P_OUT, 2621440)
        a(f'''
        s_lshl_b32 {sOut}, s58, 5
        v_and_b32 {vOut}, 31, v1
        v_mul_u32_u24 {vOut}, 1280, {vOut}
        v_lshrrev_b32 {vT}, 5, v1
        v_lshl_add_u32 {vOut}, {vT}, 4, {vOut}
        s_add_u32 {sFlag}, s58, 960
        L_ff2_c0:
        s_lshl_b32 {sFlag}, {sFlag}, 7
        ''')
    a(f'''
    v_and_b32 {vRw}, 31, v1
    v_mul_u32_u24 {vRw}, 272, {vRw}
    v_lshrrev_b32 {vT}, 5, v1
    v_lshl_add_u32 {vRr}, {vT}, 5, {vRw}
    v_lshl_add_u32 {vRw}, {vT}, 4, {vRw}
    s_mul_i32 s55, {sW}, 8704
    v_add_u32 {vRw}, s55, {vRw}
    s_lshl_b32 s55, {sW}, 6
    v_add_u32 {vRr}, s55, {vRr}
    ''')
    wait_start(f'v{RES}', vT, 0x30)
    a(f's_mov_b32 {sS}, 0\n s_barrier')
    LOOP = f'L_{kind}_loop'
    a.label(LOOP)
    a(f'v_add_u32 {vThr}, {sS}, {vAdd}')
    poll(vFl, vThr, vT, 0x31)
    vm = Cnt('vmcnt', 63)
    tk = []
    a(f's_mov_b32 s56, {sIn}')
    for k in range(NK):
        if k and k % 4 == 0: a('s_add_u32 s56, s56, 4096')
        tk.append(vm.issue(f'buffer_load_dwordx4 {vr(B+4*k,4)}, {vLin}, {WS}, s56 offen offset:{(k%4)*1024} sc1'))
    if kind != 'wos':
        vm.issue(f'buffer_load_dwordx4 {vr(RES,4)}, {vLin}, {WS}, {sRes} offen sc1')
    a(f's_add_u32 {sIn}, {sIn}, {istr}\n s_add_u32 {sRes}, {sRes}, {XITEM}')
    if kind != 'ff2':
        a(f's_and_b32 s57, {sS}, 3\n s_lshl_b32 s57, s57, 13\n s_add_u32 s57, s57, {sPair}')
    a(f's_add_u32 {sS}, {sS}, 1')
    for k in range(NK):
        vm.wait(tk[k])
        for t in range(2):
            a(f'v_mfma_f32_32x32x16_bf16 {vr(ACC[t],16)}, {ar(W(t,k),4)}, {vr(B+4*k,4)}, {vr(ACC[t],16) if k else 0}')
    def pair_loads():
        a(f'buffer_load_dwordx4 {vr(PR,4)}, {vLin}, {WS}, s57 offen sc1\n buffer_load_dwordx4 {vr(PR+4,4)}, {vLin}, {WS}, s57 offen offset:1024 sc1')
    if kind == 'wor': pair_loads()
    for t in range(2):
        for q in range(4):
            a(f'ds_write_b128 {vRw}, {vr(ACC[t]+4*q,4)} offset:{(t*32+8*q)*4}')
    a('s_waitcnt lgkmcnt(0)\n s_barrier')
    for w in range(4):
        for h in range(2):
            a(f'ds_read_b128 {vr(RD+8*w+4*h,4)}, {vRr} offset:{w*8704+h*16}')
    a(f'v_xor_b32 {vRw}, 0x10000, {vRw}\n v_xor_b32 {vRr}, 0x10000, {vRr}')
    a('s_waitcnt lgkmcnt(4)')
    for i in range(8): a(f'v_add_f32 v{RD+i}, v{RD+i}, v{RD+8+i}')
    a('s_waitcnt lgkmcnt(0)')
    for i in range(8): a(f'v_add_f32 v{RD+16+i}, v{RD+16+i}, v{RD+24+i}')
    for i in range(8): a(f'v_add_f32 v{RD+i}, v{RD+i}, v{RD+16+i}')
    if kind == 'wos':
        a(f'v_mov_b32 {vT}, {sS}\n s_movk_i32 s56, 0x7f')
        for i in range(8): a(f'v_bfi_b32 v{RD+i}, s56, {vT}, v{RD+i}')
        a(f'buffer_store_dwordx4 {vr(RD,4)}, {vLin}, {WS}, s57 offen sc1\n buffer_store_dwordx4 {vr(RD+4,4)}, {vLin}, {WS}, s57 offen offset:1024 sc1')
    else:
        if kind == 'wor':
            a.label('L_wor_chk')
            a(f's_waitcnt vmcnt(0)\n v_xor_b32 {vT}, {sS}, v{PR}')
            for i in range(1, 8): a(f'v_xor_b32 {vThr}, {sS}, v{PR+i}\n v_or_b32 {vT}, {vT}, {vThr}')
            a(f'v_and_b32 {vT}, 0x7f, {vT}\n v_cmp_ne_u32 vcc, 0, {vT}\n s_cbranch_vccz L_wor_ok')
            spin_guard(0x32, 0)
            pair_loads()
            a('s_branch L_wor_chk')
            a.label('L_wor_ok')
            for i in range(8): a(f'v_add_f32 v{RD+i}, v{RD+i}, v{PR+i}')
        else:
            a('s_waitcnt vmcnt(0)')
        for i in range(4): a(f'v_cvt_pk_bf16_f32 v{RD+8+i}, v{RD+2*i}, v{RD+2*i+1}')
        for i in range(4):
            a(f'''
            v_lshlrev_b32 v{RD+2*i}, 16, v{RD+8+i}
            v_and_b32 v{RD+2*i+1}, 0xffff0000, v{RD+8+i}
            v_lshlrev_b32 v{RD+16+2*i}, 16, v{RES+i}
            v_and_b32 v{RD+17+2*i}, 0xffff0000, v{RES+i}
            ''')
        for i in range(8): a(f'v_add_f32 v{RD+i}, v{RD+i}, v{RD+16+i}')
        for i in range(4): a(f'v_cvt_pk_bf16_f32 v{RD+8+i}, v{RD+2*i}, v{RD+2*i+1}')
        if kind == 'wor': a(f'buffer_store_dwordx4 {vr(RD+8,4)}, {vLin}, {WS}, {sOut} offen sc1')
        else: a(f'buffer_store_dwordx4 {vr(RD+8,4)}, {vOut}, {SC}, {sOut} offen sc1')
        a(f's_add_u32 {sOut}, {sOut}, {XITEM}\n v_mov_b32 {vT}, {sS}\n s_waitcnt vmcnt(0)')
        a(f'buffer_store_dword {vT}, off, {WS}, {sFlag} sc1')
    a(f's_cmp_lt_u32 {sS}, 64\n s_cbranch_scc1 {LOOP}\n s_endpgm')

def next_task(dst, src):
    L = cfg.lag
    a(f'''
    s_add_u32 s55, {src}, {64 - L}
    s_sub_u32 s56, {src}, {63 - L}
    s_cmp_lt_u32 {src}, 64
    s_cselect_b32 s55, s55, s56
    s_sub_u32 s56, {src}, {L}
    s_cmp_lt_u32 s56, {127 - 2*L}
    s_cselect_b32 s55, s55, 0
    s_add_u32 s56, {src}, 1
    s_cmp_lg_u32 s55, 0
    s_cselect_b32 {dst}, s55, s56
    s_min_u32 {dst}, {dst}, 128
    ''')

def chain_mode(sMode, vt):
    a(f's_lshl_b32 s55, {sG}, 6\n buffer_load_dword {vt}, off, {DBG}, s55 offset:64 sc1\n s_waitcnt vmcnt(0)\n v_readfirstlane_b32 s55, {vt}\n s_bcnt1_i32_b32 s55, s55\n s_cmp_lg_u32 s55, 1\n s_cselect_b32 {sMode}, 1, 0')
    if getattr(cfg, 'slow', 0): a(f's_mov_b32 {sMode}, 1')

def local_store(insn, sMode):
    S, D = a.newlabel('Lls'), a.newlabel('Lld')
    a(f's_cmp_lg_u32 {sMode}, 0\n s_cbranch_scc1 {S}\n {insn}\n s_branch {D}')
    a.label(S); a(insn + ' sc1'); a.label(D)

def idx_reg(v, t):
    a(f'v_mov_b32 {v}, 0x4444\n v_mov_b32 {t}, 0xeeee\n v_and_b32 v251, 8, v1\n v_cmp_ne_u32 vcc, 0, v251\n v_cndmask_b32 {v}, {v}, {t}, vcc')

SMF = 'v_smfmac_f32_16x16x64_bf16'

def role_woc():
    a.label('L_role_woc')
    def W(k, t):
        b = (k * 3 + t) * 8
        return b if b < 256 else 256 + 128 + (b - 256)
    vIdx, vLin, vPr, vT, vPw, vPrd, vSt, CL, CR = 'v2', 'v3', 'v4', 'v5', 'v6', 'v7', 'v8', 'v9', 'v10'
    AL, AR, A, RD = 12, 24, 36, 100
    sJ, sCur, sMode, sStage, sL, sR, sM = 's60', 's61', 's62', 's63', 's64', 's65', 's66'
    srd(SA, P_WO, 5242880)
    a(f's_sub_u32 {sJ}, {sT}, 16')
    lane_fields()
    idx_reg(vIdx, vT)
    a(f's_mul_i32 {sStage}, {sW}, 40960')
    a(f'''
    v_and_b32 v250, 1, v252
    v_lshlrev_b32 v250, 4, v250
    v_lshrrev_b32 v251, 1, v252
    v_lshl_add_u32 v250, v251, 2, v250
    v_lshrrev_b32 v251, 1, v253
    v_lshl_add_u32 v250, v251, 5, v250
    v_and_b32 v251, 1, v253
    v_add_u32 v250, v251, v250
    v_lshlrev_b32 v250, 7, v250
    v_lshl_add_u32 v250, v254, 3, v250
    v_add_u32 v120, {sStage}, v250
    ''')
    src_voff('v121', 128, 1280, 'v251')
    a(f'''
    s_mul_i32 s58, {sW}, {512*1280}
    s_mul_i32 s55, {sJ}, 96
    s_add_u32 s58, s58, s55
    s_xor_b32 s55, {sG}, 1
    s_mul_i32 s55, s55, {2048*1280}
    s_add_u32 s59, s58, s55
    s_mul_i32 s55, {sG}, {2048*1280}
    s_add_u32 s58, s58, s55
    ''')
    chunks = []
    for k in range(16):
        reads = []
        for t in range(3):
            for rb in range(4):
                reads.append((wr(W(k, t) + 2 * rb, 2), (8 * (rb // 2) + 2 * (rb % 2)) * 128 + 32 * t))
        chunks.append(dict(srd=SA, vsrc='v121', n=8, step=8 * 1280, reads=reads,
                           setoff=f's_add_u32 s56, {"s58" if k < 8 else "s59"}, {(k%8)*64*1280}'))
    load_weights(chunks, 5, 8192, sStage, 'v120')
    a(f'''
    v_lshlrev_b32 {vLin}, 4, v1
    v_min_u32 {vT}, 15, v1
    v_lshrrev_b32 {vPr}, 1, {vT}
    v_lshlrev_b32 {vPr}, 10, {vPr}
    v_and_b32 {vT}, 1, {vT}
    v_lshl_add_u32 {vPr}, {vT}, 7, {vPr}
    v_and_b32 {vT}, 15, v1
    v_lshlrev_b32 {vPw}, 5, {vT}
    v_lshrrev_b32 {CL}, 4, v1
    v_lshl_add_u32 {vPrd}, {CL}, 3, {vPw}
    s_lshl_b32 s55, {sW}, 9
    v_add_u32 {vPrd}, s55, {vPrd}
    v_and_b32 {CR}, 1, {CL}
    v_lshl_add_u32 {vPw}, {CR}, 4, {vPw}
    v_lshrrev_b32 {CR}, 1, {CL}
    v_mul_u32_u24 {CR}, 1536, {CR}
    v_add_u32 {vPw}, {CR}, {vPw}
    s_mul_i32 s55, {sW}, 3072
    v_add_u32 {vPw}, s55, {vPw}
    s_mul_i32 s55, {sJ}, 48
    s_lshl_b32 s56, {sW}, 4
    s_add_u32 s55, s55, s56
    v_add_u32 {vT}, s55, {vT}
    v_lshlrev_b32 {vSt}, 4, {vT}
    v_lshl_add_u32 {vSt}, {CL}, 2, {vSt}
    v_mov_b32 {CR}, {HUGE}
    v_cmp_gt_u32 vcc, 640, {vT}
    v_cndmask_b32 {vSt}, {CR}, {vSt}, vcc
    ''')
    wait_start(CL, vT, 0x40)
    chain_mode(sMode, vT)
    a(f's_mov_b32 {sCur}, 0\n s_barrier')
    def loads(h):
        s = (sL, sR)[h]
        a(f's_add_u32 s57, {s}, 4096')
        for k in range(8):
            a(f'buffer_load_dwordx4 {vr(A+32*h+4*k,4)}, {vLin}, {WS}, {s if k<4 else "s57"} offen offset:{(k%4)*1024} sc1')
    def comp(h, after):
        acc, ck = (AL, AR)[h], (CL, CR)[h]
        for k in range(8):
            f = A + 32 * h + 4 * k
            a(f's_waitcnt vmcnt({after + 7 - k})')
            a(f'{SMF} {vr(acc,4)}, {vr(f,4)}, {wr(W(8*h+k,0),8)}, {vIdx}')
            if k == 0: a(f'v_max_u32 {ck}, v{f}, v{f+1}')
            else: a(f'v_max3_u32 {ck}, {ck}, v{f}, v{f+1}')
            a(f'{SMF} {vr(acc+4,4)}, {vr(f,4)}, {wr(W(8*h+k,1),8)}, {vIdx}')
            a(f'v_max3_u32 {ck}, {ck}, v{f+2}, v{f+3}')
            a(f'{SMF} {vr(acc+8,4)}, {vr(f,4)}, {wr(W(8*h+k,2),8)}, {vIdx}')
    def zero(acc):
        for i in range(12): a(f'v_mov_b32 v{acc+i}, 0')
    a.label('L_woc_loop')
    a(f'''
    s_lshl_b32 s55, {sCur}, 16
    s_lshl_b32 s56, {sW}, 13
    s_add_u32 s55, s55, s56
    s_lshl_b32 s56, {sG}, 15
    s_add_u32 {sL}, s55, s56
    s_add_u32 {sL}, {sL}, {OL}
    s_xor_b32 s56, s56, 0x8000
    s_add_u32 {sR}, s55, s56
    s_add_u32 {sR}, {sR}, {OR_}
    s_mul_i32 {sM}, {sCur}, {MEMX_ITEM}
    s_mul_i32 s55, {sG}, 10240
    s_add_u32 {sM}, {sM}, s55
    s_add_u32 {sM}, {sM}, {MEMX + MEMX_ITEM}
    ''')
    zero(AL); zero(AR)
    a.label('L_woc_probe')
    a(f'buffer_load_dword {vT}, {vPr}, {WS}, {sL} offen sc1\n s_waitcnt vmcnt(0)\n v_cmp_eq_u32 vcc, -1, {vT}\n s_cbranch_vccz L_woc_go')
    spin_guard(0x41, 0)
    a('s_branch L_woc_probe')
    a.label('L_woc_go')
    loads(0); loads(1)
    comp(0, 8); comp(1, 0)
    a.label('L_woc_chk')
    a(f'v_cmp_eq_u32 vcc, -1, {CL}\n s_cbranch_vccnz L_woc_redoL')
    a(f'v_cmp_eq_u32 vcc, -1, {CR}\n s_cbranch_vccnz L_woc_redoR')
    for i in range(12): a(f'v_add_f32 v{AL+i}, v{AL+i}, v{AR+i}')
    for t in range(3): a(f'ds_write_b128 {vPw}, {vr(AL+4*t,4)} offset:{t*512}')
    a(f's_waitcnt lgkmcnt(0)\n s_barrier\n s_cmp_eq_u32 {sW}, 3\n s_cbranch_scc1 L_woc_next')
    for p in range(8): a(f'ds_read_b64 {vr(RD+2*p,2)}, {vPrd} offset:{p*1536}')
    a('s_waitcnt lgkmcnt(4)')
    for i in range(4): a(f'v_add_f32 v{RD+i}, v{RD+i}, v{RD+4+i}')
    a('s_waitcnt lgkmcnt(0)')
    for i in range(4): a(f'v_add_f32 v{RD+8+i}, v{RD+8+i}, v{RD+12+i}')
    for i in range(4): a(f'v_add_f32 v{RD+i}, v{RD+i}, v{RD+8+i}')
    a(f'v_add_f32 v{RD}, v{RD}, v{RD+2}\n v_add_f32 v{RD+1}, v{RD+1}, v{RD+3}\n v_cvt_pk_bf16_f32 v{RD}, v{RD}, v{RD+1}\n v_min_u32 v{RD}, -2, v{RD}')
    local_store(f'buffer_store_dword v{RD}, {vSt}, {WS}, {sM} offen', sMode)
    a.label('L_woc_next')
    a(f'v_xor_b32 {vPw}, 0x4000, {vPw}\n v_xor_b32 {vPrd}, 0x4000, {vPrd}')
    a.label('L_woc_adv')
    next_task(sCur, sCur)
    a(f's_cmp_eq_u32 {sCur}, 63\n s_cbranch_scc1 L_woc_adv\n s_cmp_lt_u32 {sCur}, 127\n s_cbranch_scc1 L_woc_loop\n s_endpgm')
    for h, nm in ((0, 'L'), (1, 'R')):
        a.label(f'L_woc_redo{nm}')
        spin_guard(0x42 + h, 0)
        loads(h); zero((AL, AR)[h]); comp(h, 0)
        a('s_branch L_woc_chk')

import head
def emit_all():
    role_att()
    for k in ('wos', 'wor', 'ff2'): role_red(k)
    role_woc()
    head.role_head()
```

```python
import sys
from asmgen import *
from layout import *

class Cfg:
    timeout = 200000
    lag = 9
    stamps = False
cfg = Cfg()

a = Asm()
WS, DBG, SA, SB, SC = 's[4:7]', 's[8:11]', 's[12:15]', 's[16:19]', 's[20:23]'
sW, sG, sT, sTO, sC = 's3', 's50', 's51', 's52', 's53'
P_X, P_MEM0, P_WQ, P_WK, P_WV, P_WO, P_W1, P_W2, P_OUT = 24, 26, 28, 30, 32, 34, 40, 42, 44

class Cnt:
    def __init__(self, name, mx): self.name, self.mx, self.seq, self.done = name, mx, 0, 0
    def issue(self, text=None):
        if text: a(text)
        self.seq += 1; return self.seq
    def wait(self, tok):
        if tok <= self.done: return
        a(f's_waitcnt {self.name}({min(self.seq - tok, self.mx)})'); self.done = tok
    def waitall(self): self.wait(self.seq)

def srd(dst, ptr, nbytes):
    b = int(dst[2:].split(':')[0])
    a(f's_mov_b32 s{b}, s{ptr}\n s_mov_b32 s{b+1}, s{ptr+1}\n s_mov_b32 s{b+2}, {nbytes}\n s_mov_b32 s{b+3}, 0x20000')

def spin_guard(code, sleep=1):
    if sleep: a(f's_sleep {sleep}')
    a(f's_mov_b32 s54, {code}\n s_sub_u32 {sTO}, {sTO}, 1\n s_cbranch_scc1 L_abort')

def poll(vaddr, thr, vtmp, code, srd_=WS, sleep=1):
    L, D = a.newlabel('Lp'), a.newlabel('Lpd')
    a.label(L)
    a(f'buffer_load_dword {vtmp}, {vaddr}, {srd_}, 0 offen sc1\n s_waitcnt vmcnt(0)')
    a(f'v_cmp_gt_i32 vcc, {thr}, {vtmp}\n s_cbranch_vccz {D}')
    spin_guard(code, sleep)
    a(f's_branch {L}')
    a.label(D)

def wait_start(vz, vtmp, code):
    a(f'v_mov_b32 {vz}, 0\n s_movk_i32 s55, 256')
    poll(vz, 's55', vtmp, code, DBG, sleep=8)

def bf16r(v):
    a(f'v_cvt_pk_bf16_f32 {v}, {v}, {v}\n v_and_b32 {v}, 0xffff0000, {v}')

def flag_addr(vdst, nlanes, s_line):
    a(f'v_min_u32 {vdst}, {nlanes-1}, v1\n v_add_u32 {vdst}, {s_line}, {vdst}\n v_lshlrev_b32 {vdst}, 7, {vdst}')

def load_weights(chunks, nbuf, bufsz, s_stage, vtr, s_off='s56'):
    vm = Cnt('vmcnt', 63)
    toks = []
    def issue(i):
        ch = chunks[i]
        a(ch['setoff'])
        a(f's_add_u32 m0, {s_stage}, {(i % nbuf) * bufsz}')
        for k in range(ch['n']):
            if k: a(f's_add_u32 m0, m0, 1024\n s_add_u32 {s_off}, {s_off}, {ch["step"]}')
            t = vm.issue(f'buffer_load_dwordx4 {ch["vsrc"]}, {ch["srd"]}, {s_off} offen lds')
        toks.append(t)
    for i in range(min(nbuf, len(chunks))): issue(i)
    for i, ch in enumerate(chunks):
        vm.wait(toks[i])
        for dst, off in ch['reads']:
            a(f'ds_read_b64_tr_b16 {dst}, {vtr} offset:{(i % nbuf) * bufsz + off}')
        a('s_waitcnt lgkmcnt(0)')
        if ch.get('post'): ch['post']()
        if i + nbuf < len(chunks): issue(i + nbuf)

def lane_fields():
    a('v_lshrrev_b32 v252, 4, v1\n v_bfe_u32 v253, v1, 2, 2\n v_and_b32 v254, 3, v1')

def src_voff(vdst, runbytes, rowstride, tmp):
    lp = runbytes // 16
    sh = {4: 2, 8: 3}[lp]
    a(f'v_lshrrev_b32 {vdst}, {sh}, v1\n v_mul_u32_u24 {vdst}, {rowstride}, {vdst}\n v_and_b32 {tmp}, {lp-1}, v1\n v_lshl_add_u32 {vdst}, {tmp}, 4, {vdst}')

def prologue():
    a(f'''
    s_cmp_ge_u32 s2, 256
    s_cbranch_scc1 L_end
    s_load_dwordx16 s[24:39], s[0:1], 0
    s_load_dwordx8 s[40:47], s[0:1], 64
    s_load_dwordx2 s[48:49], s[0:1], 96
    v_and_b32 v1, 63, v0
    v_lshrrev_b32 v2, 6, v0
    v_readfirstlane_b32 {sW}, v2
    s_and_b32 {sG}, s2, 7
    s_lshr_b32 {sT}, s2, 3
    s_mov_b32 {sTO}, {cfg.timeout}
    s_mov_b32 s54, 0
    s_waitcnt lgkmcnt(0)
    ''')
    srd(WS, 48, WS_BYTES); srd(DBG, 46, 256)
    srd(SA, P_MEM0, 10240); srd(SB, P_X, 2621440); srd(SC, P_OUT, 2621440)
    a(f's_cmp_lt_u32 {sG}, 4\n s_cbranch_scc1 L_arrive')
    a(f'''
    s_sub_u32 s55, {sG}, 4
    s_lshl_b32 s55, s55, 5
    s_add_u32 s55, s55, {sT}
    v_lshlrev_b32 v2, 4, v0
    v_mov_b32 v4, 0
    v_mov_b32 v5, 0
    v_mov_b32 v6, 0
    v_mov_b32 v7, 0
    v_mov_b32 v8, -1
    v_mov_b32 v9, -1
    v_mov_b32 v10, -1
    v_mov_b32 v11, -1
    s_lshl_b32 s56, s55, 13
    buffer_store_dwordx4 v[4:7], v2, {WS}, s56 offen sc1
    s_add_u32 s56, s56, 4096
    buffer_store_dwordx4 v[4:7], v2, {WS}, s56 offen sc1
    s_lshl_b32 s56, s55, 16
    s_add_u32 s57, s56, {OR_}
    s_add_u32 s56, s56, {OL}
    s_mov_b32 s58, 16
    L_clr:
    buffer_store_dwordx4 v[8:11], v2, {WS}, s56 offen sc1
    buffer_store_dwordx4 v[8:11], v2, {WS}, s57 offen sc1
    s_add_u32 s56, s56, 4096
    s_add_u32 s57, s57, 4096
    s_sub_u32 s58, s58, 1
    s_cmp_lg_u32 s58, 0
    s_cbranch_scc1 L_clr
    s_mul_i32 s56, s55, {MEMX_ITEM}
    s_add_u32 s56, s56, {MEMX}
    s_and_b32 s57, s55, 63
    s_cmp_eq_u32 s57, 0
    s_cbranch_scc1 L_mem0
    ''')
    for k in range(5):
        a(f'buffer_store_dwordx4 v[8:11], v2, {WS}, s56 offen sc1\n s_add_u32 s56, s56, 4096')
    a('s_branch L_arrive')
    a.label('L_mem0')
    a('s_add_u32 s57, s56, 10240')
    for k in range(3):
        a(f'v_add_u32 v3, {256*k}, v0\n v_lshlrev_b32 v12, 1, v3')
        for r in range(8):
            a(f's_movk_i32 s58, {r*1280}\n buffer_load_ushort v{16+r}, v12, {SA}, s58 offen')
        a(f'v_lshlrev_b32 v13, 4, v3\n v_mov_b32 v14, 0x7ffffff0\n v_cmp_gt_u32 vcc, 640, v3\n v_cndmask_b32 v13, v14, v13, vcc\n s_waitcnt vmcnt(0)')
        for i in range(4):
            a(f'v_lshl_or_b32 v{24+i}, v{17+2*i}, 16, v{16+2*i}\n v_min_u32 v{24+i}, -2, v{24+i}')
        a(f'buffer_store_dwordx4 v[24:27], v13, {WS}, s56 offen sc1\n buffer_store_dwordx4 v[24:27], v13, {WS}, s57 offen sc1')
    a.label('L_arrive')
    a(f'''
    s_waitcnt vmcnt(0)
    s_barrier
    s_cmp_lg_u32 {sW}, 0
    s_cbranch_scc1 L_dispatch
    s_mov_b64 exec, 1
    s_cmp_ge_u32 {sG}, 2
    s_cbranch_scc1 L_arr2
    s_getreg_b32 s55, hwreg(HW_REG_XCC_ID)
    s_and_b32 s55, s55, 15
    s_lshl_b32 s55, 1, s55
    v_mov_b32 v2, s55
    s_lshl_b32 s56, {sG}, 6
    buffer_atomic_or v2, off, {DBG}, s56 offset:64 sc1
    s_waitcnt vmcnt(0)
    L_arr2:
    v_mov_b32 v2, 1
    buffer_atomic_add v2, off, {DBG}, 0 sc1
    s_mov_b64 exec, -1
    L_dispatch:
    ''')
    a(f'''
    s_cmp_lt_u32 {sG}, 2
    s_cbranch_scc1 L_chain
    s_sub_u32 s55, {sG}, 2
    s_cmp_ge_u32 s55, 3
    s_cselect_b32 {sC}, 1, 0
    s_mul_i32 s56, {sC}, 3
    s_sub_u32 s55, s55, s56
    s_cmp_eq_u32 s55, 0
    s_cbranch_scc1 L_role_kv
    s_cmp_eq_u32 s55, 1
    s_cbranch_scc1 L_grpB
    s_cmp_lt_u32 {sT}, 10
    s_cbranch_scc1 L_role_wos
    s_cmp_lt_u32 {sT}, 20
    s_cbranch_scc1 L_role_wor
    s_cmp_lt_u32 {sT}, 30
    s_cbranch_scc1 L_role_ff2
    s_branch L_end
    L_grpB:
    s_cmp_lt_u32 {sT}, 16
    s_cbranch_scc1 L_role_qq
    s_cmp_lt_u32 {sT}, 24
    s_cbranch_scc1 L_role_att
    s_cmp_lt_u32 {sT}, 31
    s_cbranch_scc1 L_role_ff1
    s_branch L_end
    L_chain:
    s_cmp_lt_u32 {sT}, 16
    s_cbranch_scc1 L_role_head
    s_cmp_lt_u32 {sT}, 30
    s_cbranch_scc1 L_role_woc
    s_branch L_end
    L_abort:
    s_lshl_b32 s55, s2, 16
    s_or_b32 s55, s55, s54
    v_mov_b32 v2, s55
    s_mov_b64 exec, 1
    buffer_store_dword v2, off, {DBG}, 0 offset:192
    v_mov_b32 v2, 1
    buffer_atomic_add v2, off, {DBG}, 0 offset:196
    s_waitcnt vmcnt(0)
    L_end:
    s_endpgm
    ''')

def role_proj(kind):
    a.label(f'L_role_{kind}')
    def W(t, p):
        b = (t * 40 + p) * 4
        return (b if b < 256 else 256 + 192 + (b - 256))
    vLin, vFl, vXa, vSw, vSr, vT = 'v2', 'v3', 5, 'v9', 'v10', 'v11'
    S1, S1b, S2, S2b, U = 12, 13, 14, 15, 16
    D0, RING, ACC, CS, SP, RV, MEAN, RSTD, PK = 20, 60, (84, 100), (116, 132), 148, 164, 180, 181, 182
    sS, sPref, sXsrc, sOut0, sOut1, sFlag, sBuf, sCol0, sCol1, sStage = 's60', 's61', 's62', 's63', 's64', 's65', 's66', 's67', 's68', 's69'
    XBUF, STAT, MS = 0, 49152, 53248
    vorient = (kind == 'kv')
    if kind == 'kv':
        rs = 8192
        srd(SA, P_WK, 5242880); srd(SB, P_WV, 5242880)
        a(f's_lshl_b32 {sCol0}, {sT}, 8\n s_lshl_b32 s55, {sW}, 6\n s_add_u32 {sCol0}, {sCol0}, s55\n s_mov_b32 {sCol1}, {sCol0}')
        a(f's_lshl_b32 {sOut0}, {sC}, 11\n s_add_u32 {sOut0}, {sOut0}, {sT}\n s_lshl_b32 {sOut0}, {sOut0}, 14\n s_lshl_b32 s55, {sW}, 11\n s_add_u32 {sOut0}, {sOut0}, s55\n s_add_u32 {sOut0}, {sOut0}, {KVB}')
        dlt, istr = 8192, 32 * 16384
        a(f's_lshl_b32 {sFlag}, {sC}, 5\n s_add_u32 {sFlag}, {sFlag}, {sT}\n s_lshl_b32 {sFlag}, {sFlag}, 2\n s_add_u32 {sFlag}, {sFlag}, {sW}\n s_add_u32 {sFlag}, {sFlag}, {PKV}')
        xbuf0, pin = 0, PXIN
    elif kind == 'qq':
        rs = 8192
        srd(SA, P_WQ, 5242880); srd(SB, P_WQ, 5242880)
        a(f's_lshl_b32 {sCol0}, {sT}, 9\n s_lshl_b32 s55, {sW}, 6\n s_add_u32 {sCol0}, {sCol0}, s55\n s_add_u32 {sCol1}, {sCol0}, 256')
        a(f's_lshl_b32 {sOut0}, {sC}, 10\n s_add_u32 {sOut0}, {sOut0}, {sT}\n s_lshl_b32 {sOut0}, {sOut0}, 14\n s_lshl_b32 s55, {sW}, 11\n s_add_u32 {sOut0}, {sOut0}, s55\n s_add_u32 {sOut0}, {sOut0}, {QB}')
        dlt, istr = 8192, 32 * 8192
        a(f's_lshl_b32 {sFlag}, {sC}, 4\n s_add_u32 {sFlag}, {sFlag}, {sT}\n s_lshl_b32 {sFlag}, {sFlag}, 2\n s_add_u32 {sFlag}, {sFlag}, {sW}\n s_add_u32 {sFlag}, {sFlag}, {PQ}')
        xbuf0, pin = 0, PXIN
    else:
        rs = 3456
        srd(SA, P_W1, 2211840); srd(SB, P_W1, 2211840)
        a(f's_sub_u32 s57, {sT}, 24\n s_lshl_b32 s57, s57, 2\n s_add_u32 s57, s57, {sW}')
        a(f's_lshl_b32 {sCol0}, s57, 7\n s_add_u32 {sCol1}, {sCol0}, 64')
        a(f's_mul_i32 {sOut0}, {sC}, {64*HITEM}\n s_lshl_b32 s55, s57, 12\n s_add_u32 {sOut0}, {sOut0}, s55\n s_add_u32 {sOut0}, {sOut0}, {HB}')
        dlt, istr = 2048, HITEM
        a(f's_lshl_b32 {sFlag}, {sC}, 5\n s_add_u32 {sFlag}, {sFlag}, s57\n s_add_u32 {sFlag}, {sFlag}, {PH}')
        xbuf0, pin = 2, PX1
    a(f's_lshl_b32 {sFlag}, {sFlag}, 7')
    a(f's_add_u32 s55, {sC}, {xbuf0}\n s_mul_i32 {sXsrc}, s55, {XSZ}\n s_mul_i32 s55, {sW}, 10240\n s_add_u32 {sXsrc}, {sXsrc}, s55\n s_add_u32 {sXsrc}, {sXsrc}, {XB}')
    lane_fields()
    a(f's_mul_i32 {sStage}, {sW}, 30720')
    a(f'''
    v_lshrrev_b32 v250, 1, v252
    v_lshl_add_u32 v250, v250, 3, v253
    v_lshlrev_b32 v250, 6, v250
    v_and_b32 v251, 1, v252
    v_lshl_add_u32 v250, v251, 5, v250
    v_lshl_add_u32 v250, v254, 3, v250
    v_add_u32 v190, {sStage}, v250
    ''')
    src_voff('v191', 64, rs, 'v251')
    chunks = []
    for t in range(2):
        for d in range(4):
            reads = []
            for i in range(10):
                for rd in range(2):
                    reads.append((wr(W(t, d * 10 + i) + 2 * rd, 2), (16 * i + 4 * rd) * 64))
            chunks.append(dict(srd=(SA, SB)[t], vsrc='v191', n=10, step=16 * rs, reads=reads,
                setoff=f's_add_u32 s56, {sW}, {d}\n s_and_b32 s56, s56, 3\n s_mul_i32 s56, s56, {160*rs}\n s_add_u32 s56, s56, {(sCol0, sCol1)[t]}'))
    load_weights(chunks, 3, 10240, sStage, 'v190')
    for i in range(4): a(f'v_mov_b32 v{D0+i}, 0x3f803f80')
    for t in range(2):
        for p in range(40):
            c = vr(CS[t], 16) if p else '0'
            if vorient and t == 1: a(f'v_mfma_f32_32x32x16_bf16 {vr(CS[t],16)}, {vr(D0,4)}, {wr(W(t,p),4)}, {c}')
            else: a(f'v_mfma_f32_32x32x16_bf16 {vr(CS[t],16)}, {wr(W(t,p),4)}, {vr(D0,4)}, {c}')
    a(f'v_lshlrev_b32 {vLin}, 4, v1')
    a(f's_mul_i32 s55, {sC}, 40\n s_mul_i32 s56, {sW}, 10\n s_add_u32 s55, s55, s56\n s_add_u32 s55, s55, {pin}')
    flag_addr(vFl, 10, 's55')
    for d in range(4):
        a(f's_add_u32 s55, {sW}, {d}\n s_and_b32 s55, s55, 3\n s_mul_i32 s55, s55, 10240\n v_add_u32 v{vXa+d}, s55, {vLin}')
    a(f'v_lshlrev_b32 {vSw}, 3, v0\n v_add_u32 {vSw}, {STAT}, {vSw}')
    a(f'v_and_b32 {vSr}, 31, v1\n v_lshlrev_b32 {vSr}, 3, {vSr}\n v_add_u32 {vSr}, {STAT}, {vSr}')
    if vorient:
        a(f's_lshl_b32 s55, {sW}, 8\n s_add_u32 s55, s55, {MS}\n v_and_b32 v190, 31, v1\n v_lshl_add_u32 v190, v190, 2, s55\n v_lshrrev_b32 v191, 5, v1\n v_lshl_add_u32 v191, v191, 4, s55')
    wait_start(f'v{U}', vT, 0x10)
    a(f's_mov_b32 {sS}, 0\n s_mov_b32 {sPref}, 0\n s_mul_i32 {sBuf}, {sW}, 10240\n s_barrier')

    def dma():
        a(f's_mov_b32 m0, {sBuf}\n s_mov_b32 s56, {sXsrc}')
        for i in range(10):
            if i and i % 4 == 0: a('s_add_u32 m0, m0, 4096\n s_add_u32 s56, s56, 4096')
            a(f'buffer_load_dwordx4 {vLin}, {WS}, s56 offen offset:{(i%4)*1024} sc1 lds')
        a(f's_add_u32 {sXsrc}, {sXsrc}, {XITEM}')
        a(f's_xor_b32 {sBuf}, {sBuf}, 0x10000')

    LOOP, GO, SKIP = f'L_{kind}_loop', f'L_{kind}_go', f'L_{kind}_skip'
    a.label(LOOP)
    a(f's_cmp_lg_u32 {sPref}, 0\n s_cbranch_scc1 {GO}\n s_add_u32 s57, {sS}, 1')
    poll(vFl, 's57', vT, 0x11)
    dma()
    a('s_waitcnt vmcnt(0)')
    a.label(GO)
    lg = Cnt('lgkmcnt', 15)
    def frag(p): return D0 + 4 * p if p < 10 else RING + 4 * ((p - 10) % 6)
    tok = {}
    def rd(p): tok[p] = lg.issue(f'ds_read_b128 {vr(frag(p),4)}, v{vXa + p//10} offset:{(p%10)*1024}')
    for p in range(10): rd(p)
    fill = []
    for k in range(40):
        x = D0 + k; u = U + 2 * (k % 2)
        fill.append(f'v_lshlrev_b32 v{u}, 16, v{x}')
        fill.append(f'v_and_b32 v{u+1}, 0xffff0000, v{x}')
        if k == 0:
            fill += [f'v_mov_b32 v{S1}, v{u}', f'v_mov_b32 v{S1b}, v{u+1}', f'v_mul_f32 v{S2}, v{u}, v{u}', f'v_mul_f32 v{S2b}, v{u+1}, v{u+1}']
        else:
            fill += [f'v_add_f32 v{S1}, v{S1}, v{u}', f'v_add_f32 v{S1b}, v{S1b}, v{u+1}', f'v_fmac_f32 v{S2}, v{u}, v{u}', f'v_fmac_f32 v{S2b}, v{u+1}, v{u+1}']
    def stat_tail():
        pass
    fi = 0
    for p in range(40):
        lg.wait(tok[p])
        for t in range(2):
            c = vr(ACC[t], 16) if p else '0'
            if vorient and t == 1: a(f'v_mfma_f32_32x32x16_bf16 {vr(ACC[t],16)}, {vr(frag(p),4)}, {wr(W(t,p),4)}, {c}')
            else: a(f'v_mfma_f32_32x32x16_bf16 {vr(ACC[t],16)}, {wr(W(t,p),4)}, {vr(frag(p),4)}, {c}')
            if t == 0:
                if p == 5: a('s_barrier')
                if p >= 5 and p + 5 < 40: rd(p + 5)
            for _ in range(4):
                if fi < len(fill): a(fill[fi]); fi += 1
        if p == 20:
            a(f'buffer_load_dword {vT}, {vFl}, {WS}, 0 offen sc1')
        if p == 28:
            a(f's_add_u32 s57, {sS}, 2\n s_waitcnt vmcnt(0)\n v_cmp_gt_i32 vcc, s57, {vT}\n s_mov_b32 {sPref}, 0\n s_cbranch_vccnz {SKIP}')
            dma()
            a(f's_mov_b32 {sPref}, 1')
            a.label(SKIP)
        if p == 30:
            assert fi == len(fill)
            a(f'v_add_f32 v{S1}, v{S1}, v{S1b}\n v_add_f32 v{S1b}, v{S2}, v{S2b}')
            tw = lg.issue(f'ds_write_b64 {vSw}, v[{S1}:{S1b}]')
        if p == 32:
            lg.wait(tw); a('s_barrier')
            for k in range(8):
                ts = lg.issue(f'ds_read_b64 {vr(SP+2*k,2)}, {vSr} offset:{k*256}')
        if p == 35:
            lg.wait(ts)
            for st in (8, 4, 2):
                for k in range(0, st):
                    a(f'v_add_f32 v{SP+k}, v{SP+k}, v{SP+k+st}')
        if p == 37:
            a(f'''
            v_mul_f32 v{MEAN}, {1/640!r}, v{SP}
            v_mul_f32 v{RSTD}, {1/640!r}, v{SP+1}
            v_fma_f32 v{RSTD}, -v{MEAN}, v{MEAN}, v{RSTD}
            v_max_f32 v{RSTD}, 0, v{RSTD}
            ''')
            bf16r(f'v{MEAN}'); bf16r(f'v{RSTD}')
            a(f'v_add_f32 v{RSTD}, 0x3727c5ac, v{RSTD}'); bf16r(f'v{RSTD}')
        if p == 38:
            a(f'v_sqrt_f32 v{RSTD}, v{RSTD}'); bf16r(f'v{RSTD}')
            a(f'v_rcp_f32 v{RSTD}, v{RSTD}')
            if vorient:
                lg.issue(f'ds_write_b32 v190, v{MEAN}'); tw = lg.issue(f'ds_write_b32 v190, v{RSTD} offset:128')
                lg.wait(tw)
                for q in range(4):
                    lg.issue(f'ds_read_b128 {vr(SP+4*q,4)}, v191 offset:{q*32}')
                    tv = lg.issue(f'ds_read_b128 {vr(RV+4*q,4)}, v191 offset:{128+q*32}')
    a(f'v_xor_b32 {vSw}, 2048, {vSw}\n v_xor_b32 {vSr}, 2048, {vSr}')
    for d in range(4): a(f'v_xor_b32 v{vXa+d}, 0x10000, v{vXa+d}')
    a(f's_add_u32 {sOut1}, {sOut0}, {dlt}')
    for t in range(2):
        A = ACC[t]
        if vorient and t == 1:
            lg.wait(tv)
            for r in range(16): a(f'v_fma_f32 v{A+r}, -v{SP+r}, v{CS[1]}, v{A+r}')
            for r in range(16): a(f'v_mul_f32 v{A+r}, v{RV+r}, v{A+r}')
        else:
            for r in range(16): a(f'v_fma_f32 v{A+r}, -v{MEAN}, v{CS[t]+r}, v{A+r}')
            for r in range(16): a(f'v_mul_f32 v{A+r}, v{RSTD}, v{A+r}')
        if kind == 'ff1':
            for r in range(16): a(f'v_mul_f32 v{SP+r}, 0xbfb8aa3b, v{A+r}')
            for r in range(16): a(f'v_exp_f32 v{SP+r}, v{SP+r}')
            for r in range(16): a(f'v_add_f32 v{SP+r}, 1.0, v{SP+r}')
            for r in range(16): a(f'v_rcp_f32 v{SP+r}, v{SP+r}')
            for r in range(16): a(f'v_mul_f32 v{A+r}, v{A+r}, v{SP+r}')
        inter = (kind == 'qq') or (kind == 'kv' and t == 0)
        for gp in range(2):
            o = PK + 4 * gp
            for i in range(4):
                if inter: x, y = A + 4 * gp + i, A + 8 + 4 * gp + i
                else: x = A + 4 * gp + 8 * (i // 2) + 2 * (i % 2); y = x + 1
                a(f'v_cvt_pk_bf16_f32 v{o+i}, v{x}, v{y}')
            a(f'buffer_store_dwordx4 {vr(o,4)}, {vLin}, {WS}, {(sOut0, sOut1)[t]} offen offset:{gp*1024} sc1')
    a(f's_add_u32 {sS}, {sS}, 1\n v_mov_b32 {vT}, {sS}\n s_add_u32 {sOut0}, {sOut0}, {istr}\n s_waitcnt vmcnt(0)')
    a(f'buffer_store_dword {vT}, off, {WS}, {sFlag} sc1')
    a(f's_cmp_lt_u32 {sS}, 64\n s_cbranch_scc1 {LOOP}\n s_endpgm')

def stub(name):
    a.label(f'L_role_{name}'); a('s_endpgm')

HEADER = f'''; Kernarg layout (104 bytes, ptrs only): A_x, A_mem0, A_Wq, A_Wk, A_Wv, A_Wo, A_seg_len, B_x, B_w1, B_w2, d_out, d_debug, d_ws
; @launch grid=(256,1,1) block=(256,1,1) lds=163840
.amdgcn_target "amdgcn-amd-amdhsa--gfx950"
.text
.globl {KNAME}
.p2align 8
.type {KNAME},@function
{KNAME}:
'''
FOOTER = f'''.section .rodata,"a"
.p2align 6
.amdhsa_kernel {KNAME}
  .amdhsa_next_free_vgpr 512
  .amdhsa_next_free_sgpr 102
  .amdhsa_accum_offset 256
  .amdhsa_group_segment_fixed_size 0
  .amdhsa_kernarg_size 104
  .amdhsa_user_sgpr_count 2
  .amdhsa_user_sgpr_kernarg_segment_ptr 1
  .amdhsa_system_sgpr_workgroup_id_x 1
.end_amdhsa_kernel
'''

def main(out):
    import roles
    prologue()
    for k in ('kv', 'qq', 'ff1'): role_proj(k)
    roles.emit_all()
    body = a.finalize()
    open(out, 'w').write(HEADER + body + FOOTER)
    print('wrote', out, 'lines', body.count('\n'), 'pads', a.npad)

if __name__ == '__main__':
    sys.modules['gen'] = sys.modules['__main__']
    for arg in sys.argv[2:]:
        k, v = arg.split('='); setattr(cfg, k, int(v))
    main(sys.argv[1])
```
